```python
import torch

def _softmax(x, axis=-1):
    return torch.softmax(x, dim=axis)
def _gelu(x):
    return torch.nn.functional.gelu(x, approximate="tanh")
def _silu(x):
    return torch.nn.functional.silu(x)
def _sigmoid(x):
    return torch.sigmoid(x)
def _layernorm(x, axis=-1, eps=1e-5):
    m = x.mean(dim=axis, keepdim=True)
    v = x.var(dim=axis, keepdim=True, unbiased=False)
    return (x - m) / torch.sqrt(v + eps)
def _scatter_add(tgt, idx, src, axis=0):
    return tgt.clone().index_add_(axis, idx, src)
def _segment_sum(src, seg, n):
    out = torch.zeros((n,) + src.shape[1:], dtype=src.dtype)
    return out.index_add_(0, seg, src)
def _pad(x, pw):
    flat = tuple(v for pair in reversed(pw) for v in pair)
    return torch.nn.functional.pad(x, flat)

kernel_name = 'standalone__sliding_block_cached__decode'

def setup_inputs():

    _w = (lambda a: (lambda t: t.to(torch.bfloat16) if t.is_floating_point() else t)(torch.as_tensor(a)))
    B, Sq, D = 2, 1, 512
    Hq, Hkv, Sk, Dh = 32, 8, 32768, 128
    assert Hq % Hkv == 0, (Hq, Hkv)
    return {
        "x": _w((lambda *s: torch.randn(*s, dtype=torch.bfloat16) * 0.8)(B, Sq, D)),
        "k_cache": _w((lambda *s: torch.randn(*s, dtype=torch.bfloat16) * 0.8)(B, Hkv, Sk, Dh)),
        "v_cache": _w((lambda *s: torch.randn(*s, dtype=torch.bfloat16) * 0.05)(B, Hkv, Sk, Dh)),
        "wq": _w((lambda *s: torch.randn(*s, dtype=torch.bfloat16) * 0.8)(D, Hq * Dh) * (D ** -0.5)),
        "wo": _w((lambda *s: torch.randn(*s, dtype=torch.bfloat16) * 0.05)(Hq * Dh, D) * ((Hq * Dh) ** -0.5)),
    }

def reference(x, k_cache, v_cache, wq, wo):
    B, Sq, D = x.shape
    Hq, Dh = 32, 128
    Hkv, Sk = k_cache.shape[1], k_cache.shape[2]
    W = min(4096, max(256, Sk // 4))
    rep = Hq // Hkv
    q = (lambda x, *d: x.permute(*d))((x @ wq).reshape(B, Sq, Hq, Dh), 0, 2, 1, 3)
    k = (lambda x, n, axis: torch.repeat_interleave(x, n, dim=axis))(k_cache[:, :, Sk - W:, :], rep, axis=1)
    v = (lambda x, n, axis: torch.repeat_interleave(x, n, dim=axis))(v_cache[:, :, Sk - W:, :], rep, axis=1)
    scores = torch.einsum("bhqd,bhkd->bhqk", q, k) * (Dh ** -0.5)
    p = _softmax(scores, axis=-1)
    o = torch.einsum("bhqk,bhkd->bhqd", p, v)
    return (lambda x, *d: x.permute(*d))(o, 0, 2, 1, 3).reshape(B, Sq, Hq * Dh) @ wo
```

```python
import sys, math, struct
NAME = "standalone__sliding_block_cached__decode"

def f32bits(x): return struct.unpack("<I", struct.pack("<f", x))[0]

class Cfg:
    pol = "nt"
    stamps = False
    S, Wl, Wh, T = 64*1024, 1024, 32*1024, 4096
    spin_max = 1 << 16

QP_OFF = 0
ST_OFF = 128*1024
OP_OFF = 256*1024
P3_OFF = 768*1024
WS_USED = 1024*1024
STAMP_OFF = 256 << 20
L_QRDY, L_STCNT, L_SCRDY, L_OCNT, L_RCNT = 0, 4, 8, 12, 16
L_Q = 0x100; L_STAT = 0x500; L_SCALE = 0x600; L_O = 0x800; L_R = 0x4800; L_END = 0x5800
NW = 13
NSTAMP = 8

def gen(out, c=Cfg):
    L = []
    A = L.append
    lab = [0]
    def newlab(p):
        lab[0] += 1
        return f"L_{p}_{lab[0]}"
    def stamp(i):
        if c.stamps:
            A(f"s_memrealtime s[{64+2*i}:{65+2*i}]")
    def nop(n):
        while n > 0:
            k = min(n, 16); A(f"s_nop {k-1}"); n -= k
    def srd(d, base, size):
        A(f"s_mov_b32 s{d}, s{base}"); A(f"s_and_b32 s{d+1}, s{base+1}, 0xffff")
        A(f"s_mov_b32 s{d+2}, {size}"); A(f"s_mov_b32 s{d+3}, 0x20000")
    def lds_wait(addr_v, off, val, tmp="v14"):
        l = newlab("lw"); d = newlab("lwd")
        A(f"s_mov_b32 s60, {c.spin_max*16}")
        A(f"{l}:")
        A(f"ds_read_b32 {tmp}, {addr_v} offset:{off}")
        A("s_waitcnt lgkmcnt(0)")
        A(f"v_readfirstlane_b32 s61, {tmp}")
        A(f"s_cmp_ge_u32 s61, {val}")
        A(f"s_cbranch_scc1 {d}")
        A("s_sleep 1")
        A("s_sub_u32 s60, s60, 1")
        A(f"s_cbranch_scc0 {l}")
        A(f"{d}:")
    def end_stamps():
        if c.stamps:
            A("s_getreg_b32 s80, hwreg(HW_REG_HW_ID)"); A("s_getreg_b32 s81, hwreg(HW_REG_XCC_ID)")
            A("s_branch L_fin")
        else:
            A("s_endpgm")

    A(f"; @launch grid=(256,1,1) block=({NW*64},1,1) lds={L_END}")
    A('.amdgcn_target "amdgcn-amd-amdhsa--gfx950"')
    A(".text"); A(f".globl {NAME}_kernel"); A(".p2align 8"); A(f".type {NAME}_kernel,@function")
    A(f"{NAME}_kernel:")
    A("s_cmp_ge_u32 s2, 256"); A("s_cbranch_scc1 L_end")
    A("s_load_dwordx16 s[4:19], s[0:1], 0")
    if c.stamps:
        for i in range(NSTAMP): A(f"s_mov_b64 s[{64+2*i}:{65+2*i}], 0")
    stamp(0)
    A("v_lshrrev_b32 v1, 6, v0")
    A("v_and_b32 v2, 63, v0")
    A("v_readfirstlane_b32 s3, v1")
    A("v_mov_b32 v15, 0")
    A("s_and_b32 s20, s2, 7")
    A("s_lshr_b32 s21, s2, 3")
    A("s_and_b32 s22, s21, 1")
    A("s_lshr_b32 s23, s21, 1")
    A("s_mov_b32 s24, 0x05040100"); A("s_mov_b32 s25, 0x07060302")
    A("v_lshlrev_b32 v3, 4, v2")
    A("s_cmp_lg_u32 s3, 0"); A("s_cbranch_scc1 L_notq")
    A("s_setprio 3")
    A("v_lshlrev_b32 v4, 2, v2")
    A("ds_write_b32 v4, v15")
    A("s_and_b32 s26, s21, 7")
    A("s_lshr_b32 s27, s21, 3")
    A("v_and_b32 v4, 7, v2"); A("v_lshlrev_b32 v4, 4, v4")
    A("v_lshrrev_b32 v5, 3, v2"); A("v_lshl_add_u32 v4, v5, 16, v4")
    A("s_lshl_b32 s28, s27, 20")
    A("s_lshl_b32 s29, s20, 10"); A("s_add_u32 s28, s28, s29")
    A("s_lshl_b32 s29, s26, 7"); A("s_add_u32 s28, s28, s29")
    A("v_bfe_u32 v5, v2, 2, 1"); A("v_lshlrev_b32 v5, 10, v5")
    A("v_lshrrev_b32 v6, 4, v2"); A("v_lshl_add_u32 v5, v6, 5, v5")
    A("v_and_b32 v6, 1, v2"); A("v_lshl_add_u32 v5, v6, 4, v5")
    A("s_lshl_b32 s29, s27, 8")
    A("s_waitcnt lgkmcnt(0)")
    A("s_barrier")
    srd(32, 4, 2048)
    srd(36, 10, 4 << 20)
    srd(40, 18, WS_USED)
    A("buffer_load_dwordx4 v[8:11], v5, s[32:35], s29 offen")
    A("buffer_load_dwordx4 v[80:83], v5, s[32:35], s29 offen offset:128")
    for t in range(16):
        ks, kk = t >> 3, t & 7
        A(f"s_add_u32 s30, s28, {(ks*64+kk)*8192}")
        A(f"buffer_load_dwordx4 v[{16+4*t}:{19+4*t}], v4, s[36:39], s30 offen {c.pol}")
    for r in range(4): A(f"v_mov_b32 v{84+r}, -1")
    A("s_lshl_b32 s44, s20, 1"); A("s_add_u32 s44, s44, s22"); A("s_lshl_b32 s44, s44, 4"); A("s_add_u32 s44, s44, s23")
    A("s_lshl_b32 s44, s44, 11"); A(f"s_add_u32 s44, s44, {OP_OFF}")
    A("buffer_store_dwordx4 v[84:87], v3, s[40:43], s44 offen sc1")
    A("buffer_store_dwordx4 v[84:87], v3, s[40:43], s44 offen offset:1024 sc1")
    A("s_lshl_b32 s45, s27, 6"); A("s_lshl_b32 s46, s20, 3"); A("s_add_u32 s45, s45, s46"); A("s_add_u32 s45, s45, s26")
    A("s_lshl_b32 s45, s45, 10"); A(f"s_add_u32 s45, s45, {P3_OFF}")
    A("buffer_store_dwordx4 v[84:87], v3, s[40:43], s45 offen sc1")
    A("s_lshl_b32 s46, s20, 4"); A("s_add_u32 s46, s46, s23"); A("s_lshl_b32 s46, s46, 1"); A("s_add_u32 s46, s46, s22")
    A("s_lshl_b32 s46, s46, 4"); A(f"s_add_u32 s46, s46, {ST_OFF}")
    A("s_mov_b64 exec, 1")
    A("buffer_store_dwordx4 v[84:87], v3, s[40:43], s46 offen sc1")
    A("s_mov_b64 exec, -1")
    stamp(1)
    for i in range(32): A(f"v_mov_b32 v{96+i}, 0")
    for qd in range(4):
        ks, half = qd >> 1, qd & 1
        src = 16 + 16*qd
        A(f"s_waitcnt vmcnt({4 + 4*(3-qd)})")
        xa = (8 if ks == 0 else 80) + 2*half
        if qd == 0:
            rounds = [(0, 88), (1, 88)]
        else:
            rounds = [(0, 16 + 16*(qd-1)), (1, 16 + 16*(qd-1) + 8)]
        for (r, fb) in rounds:
            for jj in range(2):
                j = 2*r + jj
                for hi in range(2):
                    for p in range(2):
                        A(f"v_perm_b32 v{fb + (2*jj+hi)*2 + p}, v{src + 4*(2*p+1) + j}, v{src + 4*(2*p) + j}, s{24+hi}")
            nop(2)
            for ii in range(4):
                i = 4*r + ii
                A(f"v_mfma_f32_16x16x16_bf16 v[{96+4*i}:{99+4*i}], v[{xa}:{xa+1}], v[{fb+2*ii}:{fb+2*ii+1}], v[{96+4*i}:{99+4*i}]")
    nop(8)
    for i in range(8):
        A(f"v_add_f32_dpp v{16+i}, v{97+4*i}, v{96+4*i} row_shl:8 row_mask:0xf bank_mask:0xf")
    A("v_lshrrev_b32 v5, 4, v2"); A("v_lshlrev_b32 v5, 13, v5")
    A("v_and_b32 v6, 7, v2"); A("v_lshl_add_u32 v5, v6, 5, v5")
    A("s_lshl_b32 s47, s20, 14"); A("s_lshl_b32 s48, s27, 11"); A("s_add_u32 s47, s47, s48")
    A("s_lshl_b32 s48, s26, 8"); A("s_add_u32 s47, s47, s48")
    A("s_mov_b32 exec_lo, 0x00ff00ff"); A("s_mov_b32 exec_hi, 0")
    A("buffer_store_dwordx4 v[16:19], v5, s[40:43], s47 offen sc1")
    A("buffer_store_dwordx4 v[20:23], v5, s[40:43], s47 offen offset:16 sc1")
    stamp(2)
    A("s_lshl_b32 s48, s20, 5"); A("v_mov_b32 v6, s48"); A("v_mov_b32 v7, 1")
    A("s_mov_b64 exec, 1")
    A("s_waitcnt vmcnt(0)")
    A("global_atomic_add v6, v7, s[16:17]")
    stamp(3)
    lp = newlab("pq"); ld = newlab("pqd")
    A(f"s_mov_b32 s60, {c.spin_max}")
    A(f"{lp}:")
    A("global_load_dword v7, v6, s[16:17] sc1")
    A("s_waitcnt vmcnt(0)")
    A("v_readfirstlane_b32 s61, v7")
    A("s_cmp_ge_u32 s61, 32"); A(f"s_cbranch_scc1 {ld}")
    A("s_sleep 2")
    A("s_sub_u32 s60, s60, 1"); A(f"s_cbranch_scc0 {lp}")
    A(f"{ld}:")
    A("s_mov_b64 exec, -1")
    stamp(4)
    A("s_lshl_b32 s47, s20, 14"); A("s_lshl_b32 s48, s22, 13"); A("s_add_u32 s47, s47, s48")
    A("s_add_u32 s48, s47, 4096")
    for rb in range(4):
        for hh in range(2):
            o = rb*2048 + hh*1024
            A(f"buffer_load_dwordx4 v[{16+4*(2*rb+hh)}:{19+4*(2*rb+hh)}], v3, s[40:43], s{47 + (o >> 12)} offen offset:{o & 4095} sc1")
    A("v_lshlrev_b32 v5, 3, v2")
    A("s_waitcnt vmcnt(4)")
    for e in range(8): A(f"v_add_f32 v{16+e}, v{16+e}, v{24+e}")
    A("s_waitcnt vmcnt(0)")
    for e in range(8): A(f"v_add_f32 v{32+e}, v{32+e}, v{40+e}")
    for e in range(8): A(f"v_add_f32 v{16+e}, v{16+e}, v{32+e}")
    for e in range(4): A(f"v_cvt_pk_bf16_f32 v{24+e}, v{16+2*e}, v{17+2*e}")
    A(f"ds_write_b64 v5, v[24:25] offset:{L_Q}")
    A(f"ds_write_b64 v5, v[26:27] offset:{L_Q+512}")
    A("v_mov_b32 v7, 1")
    A("s_waitcnt lgkmcnt(0)")
    A(f"ds_write_b32 v15, v7 offset:{L_QRDY}")
    stamp(5)
    lds_wait("v15", L_STCNT, 8)
    A("v_bfe_u32 v5, v2, 2, 3"); A("v_lshlrev_b32 v5, 5, v5"); A("v_and_b32 v6, 3, v2"); A("v_lshl_add_u32 v5, v6, 2, v5")
    A(f"ds_read_b32 v16, v5 offset:{L_STAT}")
    A(f"ds_read_b32 v17, v5 offset:{L_STAT+16}")
    A("s_waitcnt lgkmcnt(0)")
    A("v_max_f32_dpp v18, v16, v16 row_ror:4 row_mask:0xf bank_mask:0xf"); nop(2)
    A("v_max_f32_dpp v18, v18, v18 row_ror:8 row_mask:0xf bank_mask:0xf")
    A("v_mov_b32 v19, v18"); nop(2)
    A("v_permlane16_swap_b32 v18, v19"); nop(1)
    A("v_max_f32 v18, v18, v19")
    A("v_sub_f32 v19, v16, v18")
    A("v_exp_f32 v19, v19"); nop(1)
    A("v_mul_f32 v20, v19, v17"); nop(2)
    A("v_add_f32_dpp v20, v20, v20 row_ror:4 row_mask:0xf bank_mask:0xf"); nop(2)
    A("v_add_f32_dpp v20, v20, v20 row_ror:8 row_mask:0xf bank_mask:0xf")
    A("v_mov_b32 v21, v20"); nop(2)
    A("v_permlane16_swap_b32 v20, v21"); nop(1)
    A("v_add_f32 v20, v20, v21")
    A("v_rcp_f32 v21, v20")
    A("v_log_f32 v22, v20"); nop(1)
    A("v_mul_f32 v19, v19, v21")
    A("v_add_f32 v22, v22, v18")
    A("v_lshlrev_b32 v5, 2, v2")
    A("s_mov_b32 exec_hi, 0")
    A(f"ds_write_b32 v5, v19 offset:{L_SCALE}")
    A("s_mov_b64 exec, 15")
    A("buffer_store_dword v22, v5, s[40:43], s46 offen sc1")
    A("s_mov_b64 exec, -1")
    A("s_waitcnt lgkmcnt(0)")
    A(f"ds_write_b32 v15, v7 offset:{L_SCRDY}")
    stamp(6)
    le = newlab("qend")
    A("s_cmp_ge_u32 s2, 64"); A(f"s_cbranch_scc1 {le}")
    A("v_lshlrev_b32 v5, 5, v2")
    lp = newlab("pa"); ld = newlab("pad")
    A("s_mov_b64 exec, 0xff")
    A(f"s_mov_b32 s60, {c.spin_max}")
    A(f"{lp}:")
    A("global_load_dword v7, v5, s[16:17] sc1")
    A("s_waitcnt vmcnt(0)")
    A("v_cmp_gt_u32 vcc, 32, v7")
    A("s_cmp_eq_u64 vcc, 0"); A(f"s_cbranch_scc1 {ld}")
    A("s_sleep 2")
    A("s_sub_u32 s60, s60, 1"); A(f"s_cbranch_scc0 {lp}")
    A(f"{ld}:")
    A("s_mov_b64 exec, -1")
    A("v_lshrrev_b32 v5, 2, v2"); A("v_lshlrev_b32 v5, 10, v5"); A("v_and_b32 v6, 3, v2"); A("v_lshl_add_u32 v5, v6, 4, v5")
    A("s_lshr_b32 s47, s2, 4"); A("s_lshl_b32 s47, s47, 16"); A("s_and_b32 s48, s2, 15"); A("s_lshl_b32 s49, s48, 6")
    A("s_add_u32 s47, s47, s49"); A(f"s_add_u32 s47, s47, {P3_OFF}")
    for t in range(1, 4): A(f"s_add_u32 s{49+t}, s47, {t*16384}")
    A("s_lshr_b32 s53, s2, 4"); A("s_lshl_b32 s53, s53, 8")
    A("s_lshr_b32 s54, s48, 2"); A("s_lshl_b32 s54, s54, 6"); A("s_add_u32 s53, s53, s54")
    A("s_bfe_u32 s54, s48, 0x10001"); A("s_lshl_b32 s54, s54, 10"); A("s_add_u32 s53, s53, s54")
    A("s_and_b32 s54, s48, 1"); A("s_lshl_b32 s54, s54, 3"); A("s_add_u32 s53, s53, s54")
    A("v_lshlrev_b32 v6, 1, v6")
    srd(32, 14, 2048)
    lp = newlab("p3"); ld = newlab("p3d")
    A(f"s_mov_b32 s60, {c.spin_max}")
    A(f"{lp}:")
    for t in range(4):
        A(f"buffer_load_dwordx4 v[{16+4*t}:{19+4*t}], v5, s[40:43], s{47 if t == 0 else 49+t} offen sc1")
    A("s_waitcnt vmcnt(0)")
    A("v_max3_u32 v7, v16, v17, v18")
    for e in range(19, 31, 2): A(f"v_max3_u32 v7, v7, v{e}, v{e+1}")
    A("v_max_u32 v7, v7, v31")
    A("v_cmp_eq_u32 vcc, -1, v7")
    A("s_cmp_eq_u64 vcc, 0"); A(f"s_cbranch_scc1 {ld}")
    A("s_sub_u32 s60, s60, 1"); A(f"s_cbranch_scc0 {lp}")
    A(f"{ld}:")
    for e in range(4): A(f"v_add_f32 v{16+e}, v{16+e}, v{20+e}")
    for e in range(4): A(f"v_add_f32 v{24+e}, v{24+e}, v{28+e}")
    for e in range(4): A(f"v_add_f32 v{16+e}, v{16+e}, v{24+e}")
    for n in (4, 8):
        for e in range(4): A(f"v_add_f32_dpp v{16+e}, v{16+e}, v{16+e} row_ror:{n} row_mask:0xf bank_mask:0xf")
    for sw in ("16", "32"):
        for e in range(4): A(f"v_mov_b32 v{20+e}, v{16+e}")
        for e in range(4): A(f"v_permlane{sw}_swap_b32 v{16+e}, v{20+e}")
        for e in range(4): A(f"v_add_f32 v{16+e}, v{16+e}, v{20+e}")
    A("v_cvt_pk_bf16_f32 v20, v16, v17")
    A("v_cvt_pk_bf16_f32 v21, v18, v19")
    A("s_mov_b64 exec, 15")
    A("buffer_store_short v20, v6, s[32:35], s53 offen")
    A("buffer_store_short_d16_hi v20, v6, s[32:35], s53 offen offset:16")
    A("buffer_store_short v21, v6, s[32:35], s53 offen offset:32")
    A("buffer_store_short_d16_hi v21, v6, s[32:35], s53 offen offset:48")
    A("s_mov_b64 exec, -1")
    A(f"{le}:")
    stamp(7)
    end_stamps()

    A("L_notq:")
    A("s_cmp_gt_u32 s3, 8"); A("s_cbranch_scc1 L_st2")
    A("s_sub_u32 s26, s3, 1")
    A("s_lshl_b32 s27, s22, 3"); A("s_add_u32 s27, s27, s20"); A("s_lshl_b32 s27, s27, 23")
    A(f"s_mul_i32 s28, s23, {c.S}"); A("s_add_u32 s27, s27, s28"); A(f"s_add_u32 s27, s27, {28672*256}")
    A("s_and_b32 s28, s26, 3"); A(f"s_mul_i32 s28, s28, {c.Wl}"); A("s_add_u32 s27, s27, s28")
    A("s_lshr_b32 s28, s26, 2"); A(f"s_mul_i32 s28, s28, {c.Wh}"); A("s_add_u32 s27, s27, s28")
    A("v_bfe_u32 v4, v2, 2, 2"); A("v_lshlrev_b32 v4, 8, v4"); A("v_lshrrev_b32 v5, 4, v2"); A("v_lshl_add_u32 v4, v5, 6, v4")
    A("v_and_b32 v5, 3, v2"); A("v_lshl_add_u32 v4, v5, 4, v4")
    A("v_lshrrev_b32 v6, 2, v2"); A("v_lshlrev_b32 v6, 4, v6"); A("v_lshl_add_u32 v6, v5, 8, v6")
    A("s_barrier")
    A("s_waitcnt lgkmcnt(0)")
    srd(32, 6, 128 << 20); srd(36, 8, 128 << 20); srd(40, 18, WS_USED)
    for (sr, base, va) in ((32, 16, "v4"), (36, 48, "v3")):
        for t in range(8):
            o = t * c.T
            if o < 4096:
                A(f"buffer_load_dwordx4 v[{base+4*t}:{base+3+4*t}], {va}, s[{sr}:{sr+3}], s27 offen offset:{o} {c.pol}")
            else:
                A(f"s_add_u32 s30, s27, {o}")
                A(f"buffer_load_dwordx4 v[{base+4*t}:{base+3+4*t}], {va}, s[{sr}:{sr+3}], s30 offen {c.pol}")
    stamp(1)
    lds_wait("v15", L_QRDY, 1)
    stamp(2)
    A(f"ds_read_b128 v[8:11], v6 offset:{L_Q}")
    A("s_waitcnt lgkmcnt(0)")
    for t in range(8):
        A(f"s_waitcnt vmcnt({15-t})")
        A(f"v_mfma_f32_16x16x32_bf16 v[{80+4*t}:{83+4*t}], v[{16+4*t}:{19+4*t}], v[8:11], 0")
    stamp(3)
    nop(2)
    for r in range(1, 4):
        for t in range(8):
            A(f"v_add_f32_dpp v{80+4*t}, v{80+4*t+r}, v{80+4*t} row_shl:{4*r} row_mask:0xf bank_mask:0xf")
    A(f"s_mov_b32 s28, {f32bits(128 ** -0.5):#x}")
    A(f"s_mov_b32 s29, {f32bits(math.log2(math.e)):#x}")
    A("s_mov_b32 s31, 0xffff0000")
    for p in range(4): A(f"v_cvt_pk_bf16_f32 v{81+8*p}, v{80+8*p}, v{84+8*p}")
    for p in range(4):
        A(f"v_lshlrev_b32 v{80+8*p}, 16, v{81+8*p}"); A(f"v_and_b32 v{84+8*p}, s31, v{81+8*p}")
    for t in range(8): A(f"v_mul_f32 v{80+4*t}, s28, v{80+4*t}")
    for p in range(4): A(f"v_cvt_pk_bf16_f32 v{81+8*p}, v{80+8*p}, v{84+8*p}")
    for p in range(4):
        A(f"v_lshlrev_b32 v{80+8*p}, 16, v{81+8*p}"); A(f"v_and_b32 v{84+8*p}, s31, v{81+8*p}")
    A("v_max3_f32 v12, v80, v84, v88"); A("v_max3_f32 v13, v92, v96, v100"); A("v_max3_f32 v12, v12, v104, v108"); A("v_max_f32 v12, v12, v13")
    for sw in ("16", "32"):
        A("v_mov_b32 v13, v12"); nop(2); A(f"v_permlane{sw}_swap_b32 v12, v13"); nop(1); A("v_max_f32 v12, v12, v13")
    A("v_mul_f32 v12, s29, v12")
    for t in range(8): A(f"v_fma_f32 v{80+4*t}, v{80+4*t}, s29, -v12")
    for t in range(8): A(f"v_exp_f32 v{80+4*t}, v{80+4*t}")
    nop(1)
    A("v_add_f32 v13, v80, v84"); A("v_add_f32 v14, v88, v92"); A("v_add_f32 v81, v96, v100"); A("v_add_f32 v82, v104, v108")
    A("v_add_f32 v13, v13, v14"); A("v_add_f32 v81, v81, v82"); A("v_add_f32 v13, v13, v81")
    for p in range(4): A(f"v_cvt_pk_bf16_f32 v{8+p}, v{80+8*p}, v{84+8*p}")
    for sw in ("16", "32"):
        A("v_mov_b32 v14, v13"); nop(2); A(f"v_permlane{sw}_swap_b32 v13, v14"); nop(1); A("v_add_f32 v13, v13, v14")
    A("s_lshl_b32 s28, s26, 5"); A("v_lshl_add_u32 v5, v2, 2, s28")
    A("v_mov_b32 v7, 1")
    A("s_mov_b64 exec, 15")
    A(f"ds_write_b32 v5, v12 offset:{L_STAT}")
    A(f"ds_write_b32 v5, v13 offset:{L_STAT+16}")
    A("s_mov_b64 exec, 1")
    A("s_waitcnt lgkmcnt(0)")
    A(f"ds_add_u32 v15, v7 offset:{L_STCNT}")
    A("s_mov_b64 exec, -1")
    stamp(4)
    for p in range(4):
        A(f"s_waitcnt vmcnt({6-2*p})")
        for j in range(4):
            for hi in range(2):
                A(f"v_perm_b32 v{16 + 4*(2*j+hi) + p}, v{48 + 4*(2*p+1) + j}, v{48 + 4*(2*p) + j}, s{24+hi}")
    stamp(5)
    for i in range(8):
        A(f"v_mfma_f32_16x16x32_bf16 v[{80+4*i}:{83+4*i}], v[8:11], v[{16+4*i}:{19+4*i}], 0")
    A("s_lshl_b32 s28, s26, 11"); A("v_add_u32 v5, s28, v3")
    A("s_mov_b64 exec, 0xffff")
    nop(3)
    for i in range(8):
        A(f"ds_write_b128 v5, v[{80+4*i}:{83+4*i}] offset:{L_O + i*256}")
    A("s_mov_b64 exec, 1")
    A("s_waitcnt lgkmcnt(0)")
    A(f"ds_add_rtn_u32 v6, v15, v7 offset:{L_OCNT}")
    A("s_mov_b64 exec, -1")
    A("s_waitcnt lgkmcnt(0)")
    A("v_readfirstlane_b32 s28, v6")
    le = newlab("kvend")
    A("s_cmp_lg_u32 s28, 7"); A(f"s_cbranch_scc1 {le}")
    lds_wait("v15", L_SCRDY, 1)
    for u in range(8): A(f"ds_read_b128 v[{80+4*u}:{83+4*u}], v15 offset:{L_SCALE + 16*u}")
    for u in range(8):
        for hh in range(2):
            A(f"ds_read_b128 v[{16+8*u+4*hh}:{19+8*u+4*hh}], v3 offset:{L_O + u*2048 + hh*1024}")
    A("s_lshl_b32 s44, s20, 1"); A("s_add_u32 s44, s44, s22"); A("s_lshl_b32 s44, s44, 4"); A("s_add_u32 s44, s44, s23")
    A("s_lshl_b32 s44, s44, 11"); A(f"s_add_u32 s44, s44, {OP_OFF}")
    for u in range(8):
        A(f"s_waitcnt lgkmcnt({min(15, 14-2*u)})")
        for e in range(8):
            if u == 0: A(f"v_mul_f32 v{112+e}, v{16+e}, v{80+(e&3)}")
            else: A(f"v_fmac_f32 v{112+e}, v{16+8*u+e}, v{80+4*u+(e&3)}")
    A("buffer_store_dwordx4 v[112:115], v3, s[40:43], s44 offen sc1")
    A("buffer_store_dwordx4 v[116:119], v3, s[40:43], s44 offen offset:1024 sc1")
    stamp(6)
    A(f"{le}:")
    stamp(7)
    end_stamps()

    A("L_st2:")
    A("s_sub_u32 s26, s3, 9")
    A("s_and_b32 s27, s21, 7")
    A("s_lshr_b32 s28, s21, 3")
    A("v_lshrrev_b32 v4, 4, v2"); A("v_lshlrev_b32 v4, 13, v4"); A("v_and_b32 v5, 15, v2"); A("v_lshl_add_u32 v4, v5, 4, v4")
    A("s_lshl_b32 s29, s20, 19"); A("s_lshl_b32 s30, s26, 15"); A("s_add_u32 s29, s29, s30")
    A("s_lshl_b32 s30, s27, 10"); A("s_add_u32 s29, s29, s30"); A("s_lshl_b32 s30, s28, 8"); A("s_add_u32 s29, s29, s30")
    A("v_lshlrev_b32 v5, 4, v5")
    A("s_lshl_b32 s46, s20, 9"); A(f"s_add_u32 s46, s46, {ST_OFF}")
    A("v_and_b32 v6, 1, v2"); A("v_lshlrev_b32 v6, 15, v6"); A("v_bfe_u32 v7, v2, 1, 3"); A("v_lshl_add_u32 v6, v7, 11, v6")
    A("v_lshrrev_b32 v7, 4, v2"); A("v_lshl_add_u32 v6, v7, 4, v6")
    A("s_lshl_b32 s44, s20, 16"); A("s_lshl_b32 s30, s27, 8"); A("s_add_u32 s44, s44, s30"); A("s_lshl_b32 s30, s26, 6"); A("s_add_u32 s44, s44, s30")
    A(f"s_add_u32 s44, s44, {OP_OFF}"); A("s_add_u32 s47, s44, 16384")
    A("s_lshl_b32 s45, s28, 6"); A("s_lshl_b32 s30, s20, 3"); A("s_add_u32 s45, s45, s30"); A("s_add_u32 s45, s45, s27")
    A("s_lshl_b32 s45, s45, 10"); A(f"s_add_u32 s45, s45, {P3_OFF}")
    A("s_barrier")
    A("s_waitcnt lgkmcnt(0)")
    srd(32, 12, 4 << 20); srd(40, 18, WS_USED)
    for kk in range(4):
        A(f"s_add_u32 s30, s29, {kk*131072}")
        A(f"buffer_load_dwordx4 v[{16+4*kk}:{19+4*kk}], v4, s[32:35], s30 offen {c.pol}")
    stamp(1)
    A("s_waitcnt vmcnt(0)")
    stamp(2)
    for j in range(4):
        for hi in range(2):
            for p in range(2):
                A(f"v_perm_b32 v{32 + 2*(2*j+hi) + p}, v{16 + 4*(2*p+1) + j}, v{16 + 4*(2*p) + j}, s{24+hi}")
    lds_wait("v15", L_QRDY, 1)
    lp = newlab("ps"); ld = newlab("psd")
    A(f"s_mov_b32 s60, {c.spin_max}")
    A(f"{lp}:")
    A("buffer_load_dwordx4 v[16:19], v5, s[40:43], s46 offen sc1")
    A("buffer_load_dwordx4 v[20:23], v5, s[40:43], s46 offen offset:256 sc1")
    A("s_waitcnt vmcnt(0)")
    A("v_max3_u32 v7, v16, v17, v18"); A("v_max3_u32 v7, v7, v19, v20"); A("v_max3_u32 v7, v7, v21, v22"); A("v_max_u32 v7, v7, v23")
    A("v_cmp_eq_u32 vcc, -1, v7")
    A("s_cmp_eq_u64 vcc, 0"); A(f"s_cbranch_scc1 {ld}")
    A("s_sleep 4")
    A("s_sub_u32 s60, s60, 1"); A(f"s_cbranch_scc0 {lp}")
    A(f"{ld}:")
    stamp(3)
    red = ("quad_perm:[2,3,0,1]", "row_ror:4", "row_ror:8")
    for e in range(4): A(f"v_max_f32 v{24+e}, v{16+e}, v{20+e}")
    for m in red:
        for e in range(4): A(f"v_max_f32_dpp v{24+e}, v{24+e}, v{24+e} {m} row_mask:0xf bank_mask:0xf")
    for e in range(8): A(f"v_sub_f32 v{16+e}, v{16+e}, v{24+(e&3)}")
    for e in range(8): A(f"v_exp_f32 v{16+e}, v{16+e}")
    nop(1)
    for e in range(4): A(f"v_add_f32 v{24+e}, v{16+e}, v{20+e}")
    for m in red:
        for e in range(4): A(f"v_add_f32_dpp v{24+e}, v{24+e}, v{24+e} {m} row_mask:0xf bank_mask:0xf")
    for e in range(4): A(f"v_rcp_f32 v{24+e}, v{24+e}")
    nop(1)
    for e in range(8): A(f"v_mul_f32 v{16+e}, v{16+e}, v{24+(e&3)}")
    A("v_lshrrev_b32 v4, 4, v2"); A("v_lshlrev_b32 v4, 8, v4"); A("v_and_b32 v5, 1, v2"); A("v_lshl_add_u32 v4, v5, 7, v4")
    A("s_lshl_b32 s30, s26, 10"); A("v_add_u32 v4, s30, v4")
    A("v_mov_b32 v12, 1")
    lp = newlab("po"); ld = newlab("pod")
    A(f"s_mov_b32 s60, {c.spin_max}")
    A(f"{lp}:")
    A("buffer_load_dwordx4 v[48:51], v6, s[40:43], s44 offen sc1")
    A("buffer_load_dwordx4 v[52:55], v6, s[40:43], s47 offen sc1")
    A("s_waitcnt vmcnt(0)")
    A("v_max3_u32 v7, v48, v49, v50"); A("v_max3_u32 v7, v7, v51, v52"); A("v_max3_u32 v7, v7, v53, v54"); A("v_max_u32 v7, v7, v55")
    A("v_cmp_eq_u32 vcc, -1, v7")
    A("s_cmp_eq_u64 vcc, 0"); A(f"s_cbranch_scc1 {ld}")
    A("s_sleep 1")
    A("s_sub_u32 s60, s60, 1"); A(f"s_cbranch_scc0 {lp}")
    A(f"{ld}:")
    stamp(4)
    for e in range(4): A(f"v_mul_f32 v{48+e}, v{48+e}, v{16+e}")
    for e in range(4): A(f"v_fmac_f32 v{48+e}, v{52+e}, v{20+e}")
    for m in red:
        for e in range(4): A(f"v_add_f32_dpp v{48+e}, v{48+e}, v{48+e} {m} row_mask:0xf bank_mask:0xf")
    A("v_cvt_pk_bf16_f32 v56, v48, v49"); A("v_cvt_pk_bf16_f32 v57, v50, v51")
    nop(2)
    for i in range(8):
        A(f"v_mfma_f32_16x16x16_bf16 v[{80+4*i}:{83+4*i}], v[{32+2*i}:{33+2*i}], v[56:57], 0")
    A("s_mov_b32 exec_lo, 0x00030003"); A("s_mov_b32 exec_hi, 0x00030003")
    nop(2)
    for i in range(8):
        A(f"ds_write_b128 v4, v[{80+4*i}:{83+4*i}] offset:{L_R + i*16}")
    A("s_mov_b64 exec, 1")
    A("s_waitcnt lgkmcnt(0)")
    A(f"ds_add_rtn_u32 v6, v15, v12 offset:{L_RCNT}")
    A("s_mov_b64 exec, -1")
    A("s_waitcnt lgkmcnt(0)")
    A("v_readfirstlane_b32 s28, v6")
    le = newlab("s2end")
    A("s_cmp_lg_u32 s28, 3"); A(f"s_cbranch_scc1 {le}")
    for w in range(4): A(f"ds_read_b128 v[{16+4*w}:{19+4*w}], v3 offset:{L_R + w*1024}")
    A("s_waitcnt lgkmcnt(2)")
    for e in range(4): A(f"v_add_f32 v{16+e}, v{16+e}, v{20+e}")
    A("s_waitcnt lgkmcnt(0)")
    for e in range(4): A(f"v_add_f32 v{24+e}, v{24+e}, v{28+e}")
    for e in range(4): A(f"v_add_f32 v{16+e}, v{16+e}, v{24+e}")
    A("buffer_store_dwordx4 v[16:19], v3, s[40:43], s45 offen sc1")
    stamp(6)
    A(f"{le}:")
    stamp(7)
    end_stamps()

    if c.stamps:
        A("L_fin:")
        A("s_waitcnt lgkmcnt(0)")
        A(f"s_mul_i32 s20, s2, {NW}"); A("s_add_u32 s20, s20, s3"); A(f"s_mul_i32 s20, s20, {8*(NSTAMP+1)}")
        A(f"s_add_u32 s18, s18, {STAMP_OFF}"); A("s_addc_u32 s19, s19, 0")
        A("s_add_u32 s18, s18, s20"); A("s_addc_u32 s19, s19, 0")
        for i in range(2*NSTAMP+2): A(f"v_mov_b32 v{16+i}, s{64+i}")
        A("v_mov_b32 v1, 0")
        A("s_mov_b64 exec, 1")
        for i in range(NSTAMP+1):
            A(f"global_store_dwordx2 v1, v[{16+2*i}:{17+2*i}], s[18:19] offset:{8*i}")
    A("L_end:"); A("s_endpgm")
    A('.section .rodata,"a"'); A(".p2align 6"); A(f".amdhsa_kernel {NAME}_kernel")
    A("  .amdhsa_next_free_vgpr 128"); A("  .amdhsa_next_free_sgpr 96"); A("  .amdhsa_accum_offset 128")
    A("  .amdhsa_group_segment_fixed_size 0"); A("  .amdhsa_kernarg_size 64"); A("  .amdhsa_user_sgpr_count 2")
    A("  .amdhsa_user_sgpr_kernarg_segment_ptr 1"); A("  .amdhsa_system_sgpr_workgroup_id_x 1"); A(".end_amdhsa_kernel")
    open(out, "w").write("\n".join(L) + "\n")

if __name__ == "__main__":
    class C1(Cfg): pass
    gen("v1.s", C1)
    class C2(Cfg): stamps = True
    gen("v1s.s", C2)
```

```python
import sys, math, struct
NAME = "standalone__sliding_block_cached__decode"
def f32bits(x): return struct.unpack("<I", struct.pack("<f", x))[0]

class Cfg:
    pol = "nt"
    stamps = False
    spin_max = 1 << 16
    na = 3; a_gap = 12
    q_release = 16
    nretry = 12
    pat0 = 28; pat1 = 64
    p3_first = 12
    pre_at = 6
    probe = 0
    patA = 24; patB = 28; patC = 80
    force_fallback = False
    force_remote = False

STR = 4352
O_QP, O_P3, O_OP = 0, 512, 1536
WS_USED = 256*STR
STAMP_OFF = 256 << 20
L_QRDY, L_STCNT, L_OCNT, L_RCNT, L_QST, L_P3, L_REM, L_PRDY = 0, 4, 12, 16, 20, 28, 36, 64
L_ZERO = 0xf0; L_Q = 0x100; L_STAT = 0x500; L_P = 0x800; L_O = 0x2800; L_R = 0x4800; L_END = 0x5800
NW = 9
NSTAMP = 8
HDR = open("standalone__sliding_block_cached__decode.s.ref").read().split("; Override launch")[0]

def gen(out, c=Cfg):
    L = []
    A = L.append
    def C(t): A("; " + t)
    lab = [0]
    def newlab(p):
        lab[0] += 1
        return f"L_{p}_{lab[0]}"
    def stamp(i):
        if c.stamps: A(f"s_memrealtime s[{64+2*i}:{65+2*i}]")
    def nop(n):
        while n > 0:
            k = min(n, 16); A(f"s_nop {k-1}"); n -= k
    def duty(thresh):
        d = newlab("du")
        A(f"s_cmp_gt_u32 s60, {thresh}"); A(f"s_cbranch_scc1 {d}")
        A("s_cmp_lg_u32 s62, 0"); A(f"s_cbranch_scc1 {d}")
        A("s_mov_b32 s62, 1")
        A("s_atomic_add s62, s[50:51], 4")
        A(f"{d}:")
    def lds_wait(off, val, sleep=1, pat=0, addr="v15"):
        l = newlab("lw"); d = newlab("lwd")
        A(f"s_mov_b32 s60, {c.spin_max*16}")
        A(f"{l}:")
        A(f"ds_read_b32 v14, {addr} offset:{off}")
        A("s_waitcnt lgkmcnt(0)")
        A("v_readfirstlane_b32 s61, v14")
        A(f"s_cmp_ge_u32 s61, {val}")
        A(f"s_cbranch_scc1 {d}")
        if sleep: A(f"s_sleep {sleep}")
        if pat: duty(c.spin_max*16 - pat)
        A("s_sub_u32 s60, s60, 1")
        A(f"s_cbranch_scc0 {l}")
        A(f"{d}:")
    def poll_empty(loads, regs, sleep=0, pre=False):
        lp = newlab("pe"); ld = newlab("ped"); lc = newlab("pec")
        A(f"s_mov_b32 s60, {c.spin_max}")
        if pre: A(f"s_branch {lc}")
        A(f"{lp}:")
        for s in loads: A(s)
        A(f"{lc}:")
        A("s_waitcnt vmcnt(0)")
        r = list(regs)
        if len(r) == 2:
            A(f"v_max_u32 v7, v{r[0]}, v{r[1]}")
        else:
            A(f"v_max3_u32 v7, v{r[0]}, v{r[1]}, v{r[2]}"); r = r[3:]
            while len(r) >= 2:
                A(f"v_max3_u32 v7, v7, v{r[0]}, v{r[1]}"); r = r[2:]
            if r: A(f"v_max_u32 v7, v7, v{r[0]}")
        A("v_cmp_eq_u32 vcc, -1, v7")
        A("s_mov_b64 exec, vcc")
        A(f"s_cbranch_execz {ld}")
        if sleep: A(f"s_sleep {sleep}")
        A("s_sub_u32 s60, s60, 1"); A(f"s_cbranch_scc0 {lp}")
        A(f"{ld}:")
        A("s_mov_b64 exec, -1")
    def fin():
        if c.stamps:
            A("s_getreg_b32 s80, hwreg(HW_REG_HW_ID)"); A("s_getreg_b32 s81, hwreg(HW_REG_XCC_ID)")
            A("s_branch L_fin")
        else:
            A("s_endpgm")
    def zstamps():
        if c.stamps:
            for i in range(1, NSTAMP): A(f"s_mov_b64 s[{64+2*i}:{65+2*i}], 0")

    for l in HDR.rstrip().split("\n"): A(l)
    A(f"; @launch grid=(256,1,1) block=({NW*64},1,1) lds={L_END}")
    C("One launch, 256 workgroups (g = wg&7 = kv head, j = wg>>3: batch j&1, key split j>>1), 9 waves each:")
    C("  wave 0   : 128x64 tile of x@wq (both batches) -> q partial, later the final sum for wg<64")
    C("  waves 1-4: 64 keys of K each; gather q, QK^T, softmax pieces, reduce + publish the split's o")
    C("  waves 5-8: 64 keys of V each + a 16x128 tile of wo; PV, combine the splits, out-projection partial")
    C("Hand-offs are self-validating words in d_ws (toggled tag bit for q, 0xffffffff = not yet written for the rest).")
    A('.amdgcn_target "amdgcn-amd-amdhsa--gfx950"')
    A(".text"); A(f".globl {NAME}_kernel"); A(".p2align 8"); A(f".type {NAME}_kernel,@function")
    A(f"{NAME}_kernel:")
    A("s_cmp_ge_u32 s2, 256"); A("s_cbranch_scc1 L_end")
    A("s_load_dwordx16 s[4:19], s[0:1], 0")
    stamp(0)
    A("v_lshrrev_b32 v1, 6, v0")
    A("v_and_b32 v2, 63, v0                     ; lane")
    A("v_readfirstlane_b32 s3, v1               ; wave")
    A("v_mov_b32 v15, 0")
    A("v_mov_b32 v13, 1")
    A("s_and_b32 s20, s2, 7                     ; g")
    A("s_lshr_b32 s21, s2, 3                    ; j")
    A("s_and_b32 s22, s21, 1                    ; b")
    A("s_lshr_b32 s23, s21, 1                   ; split")
    A("v_lshlrev_b32 v3, 4, v2")
    A(f"s_mov_b32 s42, {WS_USED}"); A("s_mov_b32 s43, 0x20000")
    A("s_mov_b32 s39, 0x20000")
    A("s_lshl_b32 s46, s20, 5")
    A("s_cmp_lg_u32 s3, 0"); A("s_cbranch_scc1 L_kv0")
    C("---------------- Q wave prologue")
    A("s_setprio 3")
    A("v_lshlrev_b32 v4, 2, v2")
    A("ds_write_b32 v4, v15")
    A("s_and_b32 s26, s21, 7")
    A("s_lshr_b32 s27, s21, 3")
    A("v_and_b32 v6, 7, v2"); A("v_lshlrev_b32 v4, 4, v6")
    A("v_lshrrev_b32 v5, 3, v2"); A("v_lshl_add_u32 v4, v5, 16, v4")
    A("s_lshl_b32 s28, s27, 13"); A("s_lshl3_add_u32 s29, s20, s26"); A("s_add_u32 s28, s28, s29"); A("s_lshl_b32 s28, s28, 7")
    A("v_bfe_u32 v5, v2, 2, 1"); A("v_lshlrev_b32 v5, 10, v5")
    A("v_lshrrev_b32 v7, 4, v2"); A("v_lshl_add_u32 v5, v7, 5, v5")
    A("v_and_b32 v8, 1, v2"); A("v_lshl_add_u32 v5, v8, 4, v5")
    A("s_lshl_b32 s29, s27, 8"); A("v_add_u32 v5, s29, v5")
    A("v_and_b32 v7, 1, v7"); A("v_lshlrev_b32 v7, 8, v7"); A("v_lshl_add_u32 v6, v6, 5, v7"); A("v_and_b32 v7, 8, v2"); A("v_lshl_add_u32 v6, v7, 1, v6")
    for r in range(4): A(f"v_mov_b32 v{84+r}, -1")
    A("v_lshlrev_b32 v12, 3, v2")
    A("s_add_u32 s44, s46, s21"); A(f"s_mul_i32 s44, s44, {STR}")
    A(f"s_mov_b32 s38, {4<<20}")
    A("s_waitcnt lgkmcnt(0)")
    A("s_mov_b64 s[36:37], s[10:11]"); A("s_mov_b64 s[40:41], s[18:19]")
    for t in range(16):
        A(f"buffer_load_dwordx4 v[{16+4*t}:{19+4*t}], v4, s[36:39], s28 offen {c.pol}")
        if t == 7: A(f"s_add_u32 s28, s28, {57*8192}")
        elif t < 15: A("s_addk_i32 s28, 8192")
        if t == 1:
            A("global_load_dwordx4 v[8:11], v5, s[4:5]")
            A("global_load_dwordx4 v[80:83], v5, s[4:5] offset:128")
            A(f"buffer_load_dwordx4 v[120:123], v6, s[40:43], s44 offen offset:{O_QP} sc1")
    C("mark own o / out-partial slots as not written")
    for k in range(3): A(f"buffer_store_dwordx4 v[84:87], v3, s[40:43], s44 offen offset:{512+1024*k} sc1")
    A(f"buffer_store_dwordx2 v[84:85], v12, s[40:43], s44 offen offset:3584 sc1")
    A(f"s_waitcnt vmcnt({c.q_release})")
    A("s_barrier")
    A("s_branch L_q")
    C("---------------- K / V wave prologue")
    A("L_kv0:")
    A("s_sub_u32 s26, s3, 1"); A("s_and_b32 s26, s26, 3                    ; w")
    A("s_and_b32 s27, s2, 15"); A("s_lshl_b32 s27, s27, 7"); A("s_add_u32 s27, s27, s23"); A("s_addk_i32 s27, 112")
    A("s_lshl_b32 s27, s27, 6"); A("s_add_u32 s27, s27, s26"); A("s_lshl_b32 s27, s27, 10")
    A(f"s_mov_b32 s38, {128<<20}")
    A("s_add_u32 s28, s2, s23"); A("s_and_b32 s28, s28, 15"); A("s_lshl_b32 s29, s28, 12")
    A("s_cmp_gt_u32 s3, 4"); A("s_cbranch_scc0 L_k0")
    A("v_add_u32 v4, s27, v3")
    A("s_setprio 1")
    A("s_getpc_b64 s[48:49]")
    A("L_pf:")
    A("v_lshlrev_b32 v5, 6, v2"); A("s_lshl_b32 s28, s26, 12"); A("v_add_u32 v5, s28, v5")
    A("v_min_u32 v5, L_end-L_pf, v5")
    A("s_max_u32 s28, s26, s21"); A("s_cmp_gt_u32 s28, 1"); A("s_cbranch_scc1 L_v1")
    A("global_load_dword v8, v5, s[48:49]")
    A("L_v1:")
    A("s_waitcnt lgkmcnt(0)")
    A("s_mov_b64 s[36:37], s[8:9]")
    A("s_branch L_ld")
    A("L_k0:")
    A("s_setprio 2")
    A("v_bfe_u32 v4, v2, 2, 2"); A("v_lshl_add_u32 v4, v4, 8, s27"); A("v_lshrrev_b32 v5, 4, v2"); A("v_lshl_add_u32 v4, v5, 6, v4")
    A("v_and_b32 v5, 3, v2"); A("v_lshl_add_u32 v4, v5, 4, v4")
    A("v_lshrrev_b32 v6, 5, v2"); A("v_bfe_u32 v7, v2, 4, 1"); A("v_lshl_add_u32 v6, v6, 3, v7")
    A(f"v_mul_u32_u24 v6, {STR}, v6"); A("v_and_b32 v7, 15, v2"); A("v_lshl_add_u32 v6, v7, 4, v6")
    A("s_lshl1_add_u32 s47, s26, s46"); A(f"s_mul_i32 s47, s47, {STR}"); A("s_lshl_b32 s48, s22, 8"); A("s_add_u32 s47, s47, s48")
    A(f"s_add_u32 s48, s47, {16*STR}")
    A("s_waitcnt lgkmcnt(0)")
    A("s_mov_b64 s[40:41], s[18:19]")
    A("s_mov_b64 s[36:37], s[6:7]")
    def qload(r=112):
        A(f"buffer_load_dwordx4 v[{r}:{r+3}], v6, s[40:43], s47 offen offset:{O_QP} sc1")
        A(f"buffer_load_dwordx4 v[{r+4}:{r+7}], v6, s[40:43], s48 offen offset:{O_QP} sc1")
    if not c.force_fallback: qload()
    A("L_ld:")
    A("s_barrier")
    for t in range(16):
        A(f"buffer_load_dwordx4 v[{16+4*t}:{19+4*t}], v4, s[36:39], s29 offen {c.pol}")
        if t < 15: A("s_addk_i32 s29, 0x1000"); A("s_bitset0_b32 s29, 16")
    A("s_cmp_gt_u32 s3, 4"); A("s_cbranch_scc1 L_v")
    A("s_branch L_k")

    C("=================================================================== Q wave")
    A("L_q:")
    zstamps(); stamp(1)
    A("s_mov_b32 s24, 0x05040100"); A("s_mov_b32 s25, 0x07060302")
    A("s_getreg_b32 s30, hwreg(HW_REG_XCC_ID, 0, 4)"); A("s_lshl_b32 s30, s30, 1"); A("v_mov_b32 v1, s30")
    D = 88
    for qd in range(4):
        ks, half = qd >> 1, qd & 1
        src = 16 + 16*qd
        A(f"s_waitcnt vmcnt({4 + 4*(3-qd)})")
        if qd == 1:
            for e in range(4): A(f"v_bfi_b32 v{120+e}, 1, v{120+e}, v1")
            for e in range(4): A(f"v_xor_b32 v{120+e}, 1, v{120+e}")
        xa = (8 if ks == 0 else 80) + 2*half
        fb0 = 128 if qd == 0 else 16 + 16*(qd-1)
        for j in range(4):
            for hi in range(2):
                for p in range(2):
                    A(f"v_perm_b32 v{fb0 + 4*j + hi*2 + p}, v{src + 4*(2*p+1) + j}, v{src + 4*(2*p) + j}, s{24+hi}")
        for i in range(8):
            fb = fb0 + 2*i
            A(f"v_mfma_f32_16x16x16_bf16 v[{D+4*i}:{D+3+4*i}], v[{xa}:{xa+1}], v[{fb}:{fb+1}], " + ("0" if qd == 0 else f"v[{D+4*i}:{D+3+4*i}]"))
    A("s_waitcnt vmcnt(0)")
    for i in range(4): A(f"v_add_f32_dpp v{16+i}, v{D+1+4*i}, v{D+4*i} row_shl:8 row_mask:0xf bank_mask:0x3")
    for i in range(4, 8): A(f"v_add_f32_dpp v{12+i}, v{D+4*i}, v{D+1+4*i} row_shr:8 row_mask:0xf bank_mask:0xc")
    for i in range(4): A(f"v_bfi_b32 v{16+i}, 31, v{120+i}, v{16+i}")
    A("s_mov_b32 exec_hi, 0")
    A(f"buffer_store_dwordx4 v[16:19], v6, s[40:43], s44 offen offset:{O_QP}")
    A(f"ds_write_b32 v15, v13 offset:{L_QST}")
    stamp(2)
    A("s_add_u32 s50, s16, s46"); A("s_addc_u32 s51, s17, 0")
    A("s_mov_b32 s62, 0")
    C("write the q partial through to memory unless the whole group turned out to share this XCD's L2")
    l = newlab("qw"); d = newlab("qwd"); r = newlab("qwr")
    A(f"s_mov_b32 s60, {c.pat0}")
    A(f"{l}:")
    A(f"ds_read_b32 v14, v15 offset:{L_QRDY}")
    A(f"ds_read_b32 v9, v15 offset:{L_REM}")
    A("s_waitcnt lgkmcnt(0)")
    A("v_readfirstlane_b32 s61, v14"); A("v_readfirstlane_b32 s30, v9")
    A("s_cmp_lg_u32 s30, 0"); A(f"s_cbranch_scc1 {r}")
    A("s_cmp_ge_u32 s61, 4"); A(f"s_cbranch_scc1 {d}")
    A("s_sleep 4")
    A("s_sub_u32 s60, s60, 1"); A(f"s_cbranch_scc0 {l}")
    A(f"{r}:")
    A(f"buffer_store_dwordx4 v[16:19], v6, s[40:43], s44 offen offset:{O_QP} sc1")
    A(f"{d}:")
    A("s_mov_b64 exec, -1")
    A("s_waitcnt vmcnt(0)")
    stamp(3)
    lds_wait(L_STCNT, 4, sleep=4, pat=c.patA)
    ltk = newlab("tok")
    A("s_cmp_lg_u32 s21, 0"); A(f"s_cbranch_scc1 {ltk}")
    A("s_mov_b64 exec, 1")
    A("global_store_dword v15, v13, s[50:51] sc1")
    A("s_mov_b64 exec, -1")
    A(f"{ltk}:")
    le = newlab("qend"); lfs = newlab("qfs")
    A("s_cmp_lt_u32 s2, 64"); A(f"s_cbranch_scc1 {lfs}")
    lds_wait(L_P3, 1, sleep=8, pat=c.patB)
    A(f"s_branch {le}")
    A(f"{lfs}:")
    lds_wait(L_OCNT, 4, sleep=4)
    lp = newlab("pa"); ld = newlab("pad")
    A("v_lshlrev_b32 v5, 5, v2")
    A(f"s_mov_b32 s60, {c.spin_max}")
    A("s_mov_b64 exec, 0xff")
    A(f"{lp}:")
    A("global_load_dword v7, v5, s[16:17] sc1")
    A("s_waitcnt vmcnt(0)")
    A("v_cmp_eq_u32 vcc, 0, v7")
    A(f"s_cbranch_vccz {ld}")
    A("s_sleep 16")
    duty(c.spin_max - 12)
    A("s_sub_u32 s60, s60, 1"); A(f"s_cbranch_scc0 {lp}")
    A(f"{ld}:")
    A("s_mov_b64 exec, -1")
    A("v_lshrrev_b32 v5, 5, v2"); A("v_bfe_u32 v6, v2, 2, 3"); A("v_lshl_add_u32 v5, v5, 5, v6"); A(f"v_mul_u32_u24 v5, {STR}, v5")
    A("v_and_b32 v6, 3, v2"); A("v_lshl_add_u32 v5, v6, 4, v5")
    A("s_lshr_b32 s47, s2, 4"); A(f"s_mul_i32 s47, s47, {8*STR}"); A("s_and_b32 s48, s2, 15"); A("s_lshl_b32 s49, s48, 6")
    A("s_add_u32 s47, s47, s49")
    for t in range(1, 4): A(f"s_add_u32 s{54+t}, s47, {t*64*STR}")
    A("s_lshr_b32 s53, s2, 4"); A("s_lshl_b32 s53, s53, 8")
    A("s_lshr_b32 s54, s48, 2"); A("s_lshl_b32 s54, s54, 6"); A("s_add_u32 s53, s53, s54")
    A("s_bfe_u32 s54, s48, 0x10001"); A("s_lshl_b32 s54, s54, 10"); A("s_add_u32 s53, s53, s54")
    A("s_and_b32 s54, s48, 1"); A("s_lshl_b32 s54, s54, 3"); A("s_add_u32 s53, s53, s54")
    A("v_lshlrev_b32 v6, 1, v6")
    A("s_mov_b64 s[36:37], s[14:15]"); A("s_movk_i32 s38, 2048")
    lds_wait(L_P3, 1, pat=c.patC)
    A(f"s_sleep {c.p3_first}")
    stamp(6)
    poll_empty([f"buffer_load_dwordx4 v[{16+4*t}:{19+4*t}], v5, s[40:43], s{47 if t == 0 else 54+t} offen offset:{O_P3} sc1" for t in range(4)], list(range(16, 32)))
    stamp(5)
    for e in range(4): A(f"v_add_f32 v{16+e}, v{16+e}, v{20+e}")
    for e in range(4): A(f"v_add_f32 v{24+e}, v{24+e}, v{28+e}")
    for e in (0, 2, 1, 3): A(f"v_add_f32 v{16+e}, v{16+e}, v{24+e}")
    C("reduce-scatter over the lane bits 5,4 then all-reduce over bits 3,2: row r of the wave ends up with column group r")
    A("v_permlane32_swap_b32 v16, v18"); nop(1)
    A("v_permlane32_swap_b32 v17, v19")
    A("v_add_f32 v16, v16, v18"); A("v_add_f32 v17, v17, v19"); nop(2)
    A("v_permlane16_swap_b32 v16, v17"); nop(1)
    A("v_add_f32 v16, v16, v17"); nop(2)
    A("v_add_f32_dpp v16, v16, v16 row_ror:4 row_mask:0xf bank_mask:0xf"); nop(2)
    A("v_add_f32_dpp v16, v16, v16 row_ror:8 row_mask:0xf bank_mask:0xf")
    A("s_mov_b32 exec_lo, 0x000f000f"); A("s_mov_b32 exec_hi, 0x000f000f")
    A("v_cvt_pk_bf16_f32 v16, v16, v16")
    A("buffer_store_short v16, v4, s[36:39], s53 offen")
    A(f"{le}:")
    stamp(7)
    fin()
    idx = L.index("v_lshlrev_b32 v6, 1, v6")
    L[idx:idx+1] = ["v_lshlrev_b32 v6, 1, v6", "v_and_b32 v4, 48, v2", "v_add_u32 v4, v4, v6"]

    C("=================================================================== V waves")
    G0 = 154; WO = 120; MK = 136; PB = 16; PA = 144; ACC = 8
    A("L_v:")
    zstamps()
    A("s_and_b32 s27, s21, 7")
    A("s_lshr_b32 s28, s21, 3")
    A("v_lshrrev_b32 v7, 4, v2"); A("v_lshlrev_b32 v9, 13, v7"); A("v_and_b32 v5, 15, v2"); A("v_lshl_add_u32 v9, v5, 4, v9")
    A("s_lshl_b32 s31, s20, 19"); A("s_lshl_b32 s30, s26, 15"); A("s_add_u32 s31, s31, s30")
    A("s_lshl_b32 s30, s27, 10"); A("s_add_u32 s31, s31, s30"); A("s_lshl_b32 s30, s28, 8"); A("s_add_u32 s31, s31, s30")
    A("s_mov_b64 s[32:33], s[12:13]"); A(f"s_mov_b32 s34, {4<<20}"); A("s_mov_b32 s35, 0x20000")
    A("s_mov_b64 s[40:41], s[18:19]")
    for kk in range(4):
        A(f"buffer_load_dwordx4 v[{WO+4*kk}:{WO+3+4*kk}], v9, s[32:35], s31 offen {c.pol}")
        if kk < 3: A("s_add_u32 s31, s31, 131072")
    stamp(1)
    GL = [f"buffer_load_dword v{G0+8}, v12, s[40:43], s44 offen offset:64 sc1", f"buffer_load_dword v{G0+9}, v12, s[40:43], s47 offen offset:64 sc1",
          f"buffer_load_dwordx4 v[{G0}:{G0+3}], v6, s[40:43], s44 offen sc1", f"buffer_load_dwordx4 v[{G0+4}:{G0+7}], v6, s[40:43], s47 offen sc1"]
    pre_done = [False]
    def vwait(n):
        A(f"s_waitcnt vmcnt({n + 4 + (2 if pre_done[0] else 0)})")
        if not pre_done[0] and n <= c.pre_at:
            pre_done[0] = True
            for x in GL[:2]: A(x)
    A("s_mov_b32 s24, 0x05040100"); A("s_mov_b32 s25, 0x07060302")
    A("v_lshrrev_b32 v12, 2, v2"); A(f"v_mul_u32_u24 v12, {STR}, v12"); A("v_and_b32 v9, 3, v2"); A("v_lshl_add_u32 v6, v9, 4, v12")
    A("v_lshl_add_u32 v12, v9, 2, v12")
    A(f"s_mul_i32 s44, s46, {STR}"); A("s_lshl2_add_u32 s30, s27, s26"); A("s_mul_i32 s30, s30, 80"); A("s_add_u32 s44, s44, s30")
    A(f"s_add_u32 s44, s44, {O_OP}"); A(f"s_add_u32 s47, s44, {16*STR}")
    A("s_add_u32 s45, s46, s21"); A(f"s_mul_i32 s45, s45, {STR}")
    A("v_lshlrev_b32 v4, 8, v7"); A("v_bfe_u32 v5, v2, 2, 1"); A("v_lshl_add_u32 v4, v5, 7, v4"); A("v_bfe_u32 v5, v2, 3, 1"); A("v_lshl_add_u32 v9, v5, 2, v9"); A("v_lshl_add_u32 v4, v9, 4, v4")
    A("s_lshl_b32 s30, s26, 10"); A("v_add_u32 v4, s30, v4")
    for i in range(8):
        A(f"v_cmp_eq_u32 vcc, {i}, v9"); nop(2); A(f"v_cndmask_b32_e64 v{MK+i}, 0, -1, vcc")
    A("s_lshl_b32 s28, s26, 11")
    A("v_bfe_u32 v9, v2, 2, 2"); A("v_lshl_add_u32 v116, v9, 2, v7"); A("v_lshlrev_b32 v116, 6, v116"); A("v_and_b32 v5, 3, v2"); A("v_lshl_add_u32 v116, v5, 4, v116"); A("v_add_u32 v116, s28, v116")
    A("v_and_b32 v5, 0x33, v2"); A("v_lshl_add_u32 v5, v5, 4, s28"); A(f"v_add_u32 v5, {L_P}, v5"); A(f"v_mov_b32 v7, {L_ZERO}"); A("v_add_u32 v1, 1024, v5")
    for be in range(4):
        A(f"v_cmp_eq_u32 vcc, {be}, v9"); nop(2); A(f"v_cndmask_b32 v{PA+be}, v7, v5, vcc"); A(f"v_cndmask_b32 v{PA+4+be}, v7, v1, vcc")
    A("s_lshl_b32 s28, s26, 2"); A("v_mov_b32 v1, s28")
    def vperm(h, dst, np_=4):
        for p in range(np_):
            vwait(14-8*h-2*p)
            for j in range(4):
                for hi in range(2):
                    A(f"v_perm_b32 v{dst + 4*(2*j+hi) + p}, v{16 + 32*h + 4*(2*p+1) + j}, v{16 + 32*h + 4*(2*p) + j}, s{24+hi}")
    vperm(0, 80)
    stamp(2)
    lds_wait(L_PRDY, 1, sleep=2, addr="v1")
    for k in range(8): A(f"ds_read_b128 v[{PB+4*k}:{PB+3+4*k}], v{PA+k}")
    A("s_waitcnt lgkmcnt(0)")
    stamp(3)
    acc = (ACC, 112)
    def M(h, i):
        d = acc[i >> 2]; pb = PB + 16*h + 4*(i & 3)
        A(f"v_mfma_f32_16x16x32_bf16 v[{d}:{d+3}], v[{80+4*i}:{83+4*i}], v[{pb}:{pb+3}], " + ("0" if (h == 0 and (i & 3) == 0) else f"v[{d}:{d+3}]"))
    for i in range(8): M(0, i)
    A("s_setprio 3")
    vperm(1, 80, 3)
    vwait(0)
    stamp(5)
    def P(i): A(f"v_perm_b32 v{80 + 4*i + 3}, v{48 + 28 + (i>>1)}, v{48 + 24 + (i>>1)}, s{24+(i&1)}")
    P(0); P(1); P(2); M(1, 0); P(3); M(1, 1); P(4); M(1, 2); P(5); M(1, 3); P(6); M(1, 4); P(7); M(1, 5); M(1, 6); M(1, 7)
    nop(2)
    A(f"ds_write_b128 v116, v[{ACC}:{ACC+3}] offset:{L_O}")
    nop(5)
    A(f"ds_write_b128 v116, v[112:115] offset:{L_O+1024}")
    A("s_mov_b64 exec, 1")
    A(f"ds_add_u32 v15, v13 offset:{L_OCNT}")
    A("s_mov_b64 exec, -1")
    A("s_setprio 1")
    A("s_waitcnt vmcnt(2)")
    for j in range(4):
        for hi in range(2):
            for p in range(2):
                A(f"v_perm_b32 v{64 + 2*(2*j+hi) + p}, v{WO + 4*(2*p+1) + j}, v{WO + 4*(2*p) + j}, s{24+hi}")
    s0, s1 = G0+8, G0+9
    def red345(op, a, t):
        nop(2); A(f"{op}_dpp v{a}, v{a}, v{a} row_ror:8 row_mask:0xf bank_mask:0xf")
        for sw in ("16", "32"):
            A(f"v_mov_b32 v{t}, v{a}"); nop(2); A(f"v_permlane{sw}_swap_b32 v{a}, v{t}"); nop(1); A(f"{op} v{a}, v{a}, v{t}")
    C("split weights: softmax over the 16 splits' log-sum-exp")
    poll_empty(GL[:2], [s0, s1], sleep=2, pre=True)
    A(f"v_max_f32 v16, v{s0}, v{s1}")
    red345("v_max_f32", 16, 17)
    A(f"v_sub_f32 v{s0}, v{s0}, v16"); A(f"v_sub_f32 v{s1}, v{s1}, v16")
    A(f"v_exp_f32 v{s0}, v{s0}"); A(f"v_exp_f32 v{s1}, v{s1}"); nop(1)
    A(f"v_add_f32 v16, v{s0}, v{s1}")
    red345("v_add_f32", 16, 17)
    A("v_rcp_f32 v16, v16"); nop(1)
    A(f"v_mul_f32 v{s0}, v{s0}, v16"); A(f"v_mul_f32 v{s1}, v{s1}, v16")
    poll_empty(GL[2:], list(range(G0, G0+8)))
    stamp(6)
    if c.stamps: A("s_waitcnt lgkmcnt(0)")
    for e in range(4): A(f"v_mul_f32 v{G0+e}, v{G0+e}, v{s0}")
    for e in (0, 2, 1, 3): A(f"v_fmac_f32 v{G0+e}, v{G0+4+e}, v{s1}")
    A(f"v_permlane32_swap_b32 v{G0}, v{G0+2}"); nop(1)
    A(f"v_permlane32_swap_b32 v{G0+1}, v{G0+3}")
    A(f"v_add_f32 v{G0}, v{G0}, v{G0+2}"); A(f"v_add_f32 v{G0+1}, v{G0+1}, v{G0+3}"); nop(2)
    A(f"v_permlane16_swap_b32 v{G0}, v{G0+1}"); nop(1)
    A(f"v_add_f32 v{G0}, v{G0}, v{G0+1}"); nop(2)
    A(f"v_add_f32_dpp v{G0}, v{G0}, v{G0} row_ror:8 row_mask:0xf bank_mask:0xf"); nop(2)
    for e in range(4): A(f"v_mov_b32_dpp v{G0+4+e}, v{G0} quad_perm:[{e},{e},{e},{e}] row_mask:0xf bank_mask:0xf")
    A(f"v_cvt_pk_bf16_f32 v56, v{G0+4}, v{G0+5}"); A(f"v_cvt_pk_bf16_f32 v57, v{G0+6}, v{G0+7}")
    def AN(i): A(f"v_and_b32 v{80+2*i}, v56, v{MK+i}"); A(f"v_and_b32 v{81+2*i}, v57, v{MK+i}")
    def M2(i): A(f"v_mfma_f32_16x16x16_bf16 v[96:99], v[{64+2*i}:{65+2*i}], v[{80+2*i}:{81+2*i}], " + ("0" if i == 0 else "v[96:99]"))
    AN(0); AN(1)
    for i in range(8):
        if i == 7: nop(1)
        M2(i)
        if i + 2 < 8: AN(i + 2)
    nop(8)
    A(f"ds_write_b128 v4, v[96:99] offset:{L_R}")
    A("s_mov_b64 exec, 1")
    A(f"ds_add_rtn_u32 v6, v15, v13 offset:{L_RCNT}")
    A("s_mov_b64 exec, -1")
    for w in range(4): A(f"ds_read_b128 v[{16+4*w}:{19+4*w}], v3 offset:{L_R + w*1024}")
    A("s_waitcnt lgkmcnt(2)")
    A("v_readfirstlane_b32 s28, v6")
    for e in range(4): A(f"v_add_f32 v{16+e}, v{16+e}, v{20+e}")
    le = newlab("s2end")
    A("s_cmp_lg_u32 s28, 3"); A(f"s_cbranch_scc1 {le}")
    A("s_waitcnt lgkmcnt(0)")
    for e in range(4): A(f"v_add_f32 v{24+e}, v{24+e}, v{28+e}")
    for e in range(4): A(f"v_add_f32 v{16+e}, v{16+e}, v{24+e}")
    A(f"buffer_store_dwordx4 v[16:19], v3, s[40:43], s45 offen offset:{O_P3} sc1")
    A(f"ds_write_b32 v15, v13 offset:{L_P3}")
    A(f"{le}:")
    stamp(7)
    fin()

    C("=================================================================== K waves")
    A("L_k:")
    zstamps(); stamp(1)
    A("s_mov_b32 s31, 0xff000000"); A("s_movk_i32 s32, 0xffe0")
    A("s_getreg_b32 s33, hwreg(HW_REG_XCC_ID, 0, 4)"); A("s_lshl_b32 s33, s33, 1")
    A("s_lshl_b32 s30, s26, 8"); A("v_and_b32 v7, 31, v2"); A("v_lshl_add_u32 v7, v7, 3, s30")
    A("v_lshrrev_b32 v109, 2, v2"); A("v_lshlrev_b32 v109, 4, v109"); A("v_lshl_add_u32 v109, v5, 8, v109")
    A(f"s_mov_b32 s28, {f32bits(128 ** -0.5):#x}")
    A(f"s_mov_b32 s29, {f32bits(math.log2(math.e)):#x}")
    A("v_bfe_u32 v4, v2, 3, 1"); A("v_lshlrev_b32 v4, 10, v4"); A("v_and_b32 v9, 0x33, v2"); A("v_lshl_add_u32 v4, v9, 4, v4")
    A("v_bfe_u32 v9, v2, 2, 1"); A("v_lshl_add_u32 v4, v9, 3, v4"); A("s_lshl_b32 s30, s26, 11"); A("v_add_u32 v4, s30, v4")
    A("s_lshl_b32 s30, s26, 2"); A("v_mov_b32 v1, s30")
    def tags(dst, base):
        A(f"v_alignbit_b32 v{dst}, v{base}, 0, 1")
        for e in range(1, 8): A(f"v_alignbit_b32 v{dst}, v{base+e}, v{dst}, 1")
    def qcheck(r, lok):
        tags(11, r)
        A(f"v_xor_b32 v9, s33, v{r}"); A(f"v_xor_b32 v10, s33, v{r+4}"); A("v_or_b32 v9, v9, v10"); A("v_and_b32 v9, 30, v9")
        for e in range(8): A(f"v_and_b32 v{80+e}, s32, v{r+e}")
        A("v_xor_b32 v11, v11, v12")
        A("v_cmp_ne_u32 vcc, s31, v11")
        A(f"s_cbranch_vccz {lok}")
    if not c.force_fallback:
        A("s_waitcnt vmcnt(16)")
        tags(12, 112)
    if c.probe:
        for k in range(8): A(f"v_readlane_b32 s{84+k}, v{112 + 4*(k>>2)}, {16*(k&3)}")
        A("s_add_u32 s52, s18, s47"); A("s_addc_u32 s53, s19, 0")
        lpp = newlab("pr"); lpd = newlab("prd")
        A(f"s_mov_b32 s60, {c.probe}")
        A(f"{lpp}:")
        for k in range(8): A(f"s_load_dword s{92+k}, s[52:53], {O_QP + ((k>>1)*8 + (k&1))*STR} glc")
        A("s_waitcnt lgkmcnt(0)")
        for k in range(4): A(f"s_xor_b64 s[{92+2*k}:{93+2*k}], s[{92+2*k}:{93+2*k}], s[{84+2*k}:{85+2*k}]")
        A("s_and_b64 s[92:93], s[92:93], s[94:95]"); A("s_and_b64 s[96:97], s[96:97], s[98:99]"); A("s_and_b64 s[92:93], s[92:93], s[96:97]")
        A("s_and_b32 s92, s92, s93"); A("s_bitcmp1_b32 s92, 0"); A(f"s_cbranch_scc1 {lpd}")
        A("s_sub_u32 s60, s60, 1"); A(f"s_cbranch_scc0 {lpp}")
        A(f"{lpd}:")
    else:
        lds_wait(L_QST, 1)
    if c.force_fallback:
        A("s_sleep 100"); qload(); A("s_waitcnt vmcnt(0)"); tags(12, 112)
    lok = newlab("qok"); lp = newlab("sq"); lsk = newlab("sqs")
    A(f"s_mov_b32 s60, {c.spin_max}")
    A("s_mov_b32 s50, 0")
    stamp(6)
    for a_ in range(c.na):
        if a_: A(f"s_sleep {c.a_gap}")
        qload(112 + 8*a_)
    for a_ in range(c.na):
        A(f"s_waitcnt vmcnt({2*(c.na-1-a_)})")
        qcheck(112 + 8*a_, lok)
    A(f"{lp}:")
    A(f"s_cmp_gt_u32 s60, {c.spin_max - c.nretry}"); A(f"s_cbranch_scc1 {lsk}")
    C("slow path (this wave read its tag baseline too late): wait until all 32 members vouched for their stores")
    A("s_sleep 40")
    A("s_add_u32 s52, s16, s46"); A("s_addc_u32 s53, s17, 0")
    A("s_load_dword s50, s[52:53], 4 glc")
    A("s_waitcnt lgkmcnt(0)")
    A(f"{lsk}:")
    qload()
    A("s_waitcnt vmcnt(0)")
    qcheck(112, lok)
    A("s_cmp_ge_u32 s50, 32"); A(f"s_cbranch_scc1 {lok}")
    A("s_sleep 8")
    A("s_sub_u32 s60, s60, 1"); A(f"s_cbranch_scc0 {lp}")
    A(f"{lok}:")
    for e in range(4): A(f"v_add_f32 v{80+e}, v{80+e}, v{84+e}")
    for e in range(4): A(f"v_mov_b32 v{84+e}, v{80+e}")
    for e in range(4): A(f"v_permlane32_swap_b32 v{80+e}, v{84+e}")
    for e in range(4): A(f"v_add_f32 v{80+e}, v{80+e}, v{84+e}")
    A("v_cvt_pk_bf16_f32 v80, v80, v81"); A("v_cvt_pk_bf16_f32 v81, v82, v83")
    if c.force_remote: A("v_mov_b32 v9, 2")
    A("v_cmp_ne_u32 vcc, 0, v9")
    A(f"ds_write_b64 v7, v[80:81] offset:{L_Q}")
    A("s_mov_b64 exec, 1")
    lnr = newlab("nr")
    A(f"s_cbranch_vccz {lnr}")
    A(f"ds_write_b32 v15, v13 offset:{L_REM}")
    A(f"{lnr}:")
    A(f"ds_add_u32 v15, v13 offset:{L_QRDY}")
    A("s_mov_b64 exec, -1")
    stamp(2)
    if c.stamps: A("s_waitcnt lgkmcnt(0)")
    A("s_mov_b32 s31, 0xffff0000")
    l = newlab("qr"); d = newlab("qrd")
    A(f"s_mov_b32 s60, {c.spin_max*16}")
    A(f"{l}:")
    A(f"ds_read_b32 v14, v15 offset:{L_QRDY}")
    A(f"ds_read_b128 v[8:11], v109 offset:{L_Q}")
    A("s_waitcnt lgkmcnt(1)")
    A("v_readfirstlane_b32 s61, v14")
    A("s_cmp_ge_u32 s61, 4"); A(f"s_cbranch_scc1 {d}")
    A("s_sub_u32 s60, s60, 1"); A(f"s_cbranch_scc0 {l}")
    A(f"{d}:")
    A("s_waitcnt lgkmcnt(0)")
    X = 112
    def diag(t):
        D = 80 + 4*(t & 7); be = t >> 2; x = X + (t & 3)
        first = True
        for r in range(4):
            if r == be: continue
            rot = (4*(be - r)) % 16
            A(f"v_add_f32_dpp v{x}, v{D+r}, v{D+be if first else x} row_ror:{rot} row_mask:0xf bank_mask:{1<<be:#x}")
            first = False
    for t in range(16):
        A(f"v_mfma_f32_16x16x32_bf16 v[{80+4*(t&7)}:{83+4*(t&7)}], v[{16+4*t}:{19+4*t}], v[8:11], 0")
        if t == 3: nop(5)
        if t >= 3: diag(t-3)
    diag(13); nop(1); diag(14); diag(15)
    C("scores -> bf16, * 128^-0.5 -> bf16 (as the reference rounds them)")
    for rnd in range(2):
        for p in range(2): A(f"v_cvt_pk_bf16_f32 v{80+p}, v{X+2*p}, v{X+2*p+1}")
        for p in range(2):
            A(f"v_lshlrev_b32 v{X+2*p}, 16, v{80+p}"); A(f"v_and_b32 v{X+2*p+1}, s31, v{80+p}")
        if rnd == 0:
            for t in range(4): A(f"v_mul_f32 v{X+t}, s28, v{X+t}")
    def allred1(op, a, t):
        for n in (4, 8):
            nop(2); A(f"{op}_dpp v{a}, v{a}, v{a} row_ror:{n} row_mask:0xf bank_mask:0xf")
        for sw in ("16", "32"):
            A(f"v_mov_b32 v{t}, v{a}"); nop(2); A(f"v_permlane{sw}_swap_b32 v{a}, v{t}"); nop(1); A(f"{op} v{a}, v{a}, v{t}")
    A(f"v_max3_f32 v12, v{X}, v{X+1}, v{X+2}"); A(f"v_max_f32 v12, v12, v{X+3}")
    allred1("v_max_f32", 12, 14)
    A("v_mul_f32 v12, s29, v12")
    for t in range(4): A(f"v_fma_f32 v{X+t}, v{X+t}, s29, -v12")
    for t in range(4): A(f"v_exp_f32 v{X+t}, v{X+t}")
    nop(1)
    for p in range(2): A(f"v_cvt_pk_bf16_f32 v{88+p}, v{X+2*p}, v{X+2*p+1}")
    A(f"ds_write_b64 v4, v[88:89] offset:{L_P}")
    A(f"ds_write_b32 v1, v13 offset:{L_PRDY}")
    A(f"v_add_f32 v7, v{X}, v{X+1}"); A(f"v_add_f32 v14, v{X+2}, v{X+3}"); A("v_add_f32 v7, v7, v14")
    stamp(4)
    allred1("v_add_f32", 7, 14)
    A("s_lshl_b32 s30, s26, 2"); A("v_lshl_add_u32 v6, v5, 4, s30")
    A("s_mov_b64 exec, 15")
    A(f"ds_write_b32 v6, v12 offset:{L_STAT}")
    A(f"ds_write_b32 v6, v7 offset:{L_STAT+64}")
    A("s_mov_b64 exec, 1")
    A(f"ds_add_u32 v15, v13 offset:{L_STCNT}")
    A("s_mov_b64 exec, -1")
    A("s_add_u32 s45, s46, s21"); A(f"s_mul_i32 s45, s45, {STR}")
    A("s_mul_i32 s30, s26, 640"); A("s_add_u32 s45, s45, s30")
    A("s_lshl_b32 s30, s26, 9")
    A("v_lshl_add_u32 v8, v2, 3, s30")
    A("v_bfe_u32 v5, v2, 1, 2"); A("v_lshlrev_b32 v5, 4, v5")
    A("v_lshrrev_b32 v4, 3, v2"); A("v_mul_u32_u24 v4, 80, v4")
    A("v_lshrrev_b32 v6, 2, v5"); A("v_add_u32 v6, v6, v4")
    A("v_and_b32 v7, 7, v2"); A("v_lshl_add_u32 v4, v7, 3, v4")
    lds_wait(L_STCNT, 4, sleep=0)
    A(f"ds_read_b128 v[80:83], v5 offset:{L_STAT}")
    A(f"ds_read_b128 v[84:87], v5 offset:{L_STAT+64}")
    A(f"ds_read_b32 v9, v15 offset:{L_REM}")
    A("s_waitcnt lgkmcnt(0)")
    A("v_readfirstlane_b32 s33, v9")
    A("v_max3_f32 v14, v80, v81, v82"); A("v_max_f32 v14, v14, v83")
    for e in range(4): A(f"v_sub_f32 v{80+e}, v{80+e}, v14")
    for e in range(4): A(f"v_exp_f32 v{80+e}, v{80+e}")
    A("v_mul_f32 v7, v80, v84")
    for e in range(1, 4): A(f"v_fmac_f32 v7, v{80+e}, v{84+e}")
    A("v_log_f32 v24, v7")
    A("v_rcp_f32 v7, v7")
    A("v_add_f32 v24, v24, v14")
    for e in range(4): A(f"v_mul_f32 v{80+e}, v{80+e}, v7")
    def opstore(ins):
        lr = newlab("opr"); lo = newlab("opd")
        A("s_cmp_lg_u32 s33, 0"); A(f"s_cbranch_scc1 {lr}")
        A(ins); A(f"s_branch {lo}")
        A(f"{lr}:"); A(ins + " sc1"); A(f"{lo}:")
    opstore(f"buffer_store_dword v24, v6, s[40:43], s45 offen offset:{O_OP+64}")
    stamp(3)
    lds_wait(L_OCNT, 1, sleep=1)
    l = newlab("ow"); d = newlab("owd")
    A(f"s_mov_b32 s60, {c.spin_max*16}")
    A(f"{l}:")
    A(f"ds_read_b32 v14, v15 offset:{L_OCNT}")
    A(f"ds_read2st64_b64 v[16:19], v8 offset0:{L_O//512} offset1:{L_O//512+4}")
    A(f"ds_read2st64_b64 v[20:23], v8 offset0:{L_O//512+8} offset1:{L_O//512+12}")
    A("s_waitcnt lgkmcnt(2)")
    A("v_readfirstlane_b32 s61, v14")
    A("s_cmp_ge_u32 s61, 4"); A(f"s_cbranch_scc1 {d}")
    A("s_sub_u32 s60, s60, 1"); A(f"s_cbranch_scc0 {l}")
    A(f"{d}:")
    A("s_waitcnt lgkmcnt(1)")
    A("v_mul_f32 v96, v16, v80"); A("v_mul_f32 v97, v17, v80"); A("v_fmac_f32 v96, v18, v81"); A("v_fmac_f32 v97, v19, v81")
    A("s_waitcnt lgkmcnt(0)")
    A("v_fmac_f32 v96, v20, v82"); A("v_fmac_f32 v97, v21, v82"); A("v_fmac_f32 v96, v22, v83"); A("v_fmac_f32 v97, v23, v83")
    opstore(f"buffer_store_dwordx2 v[96:97], v4, s[40:43], s45 offen offset:{O_OP}")
    stamp(5); stamp(7)
    if c.stamps:
        fin()
        A("L_fin:")
        A("s_setprio 0"); A("s_sleep 127"); A("s_sleep 64")
        A("s_waitcnt lgkmcnt(0)")
        A(f"s_mul_i32 s20, s2, {NW}"); A("s_add_u32 s20, s20, s3"); A(f"s_mul_i32 s20, s20, {8*(NSTAMP+1)}")
        A(f"s_add_u32 s18, s18, {STAMP_OFF}"); A("s_addc_u32 s19, s19, 0")
        A("s_add_u32 s18, s18, s20"); A("s_addc_u32 s19, s19, 0")
        A("s_mov_b64 exec, 1")
        for i in range(2*NSTAMP+2): A(f"v_mov_b32 v{16+i}, s{64+i}")
        A("v_mov_b32 v1, 0")
        for i in range(NSTAMP+1):
            A(f"global_store_dwordx2 v1, v[{16+2*i}:{17+2*i}], s[18:19] offset:{8*i}")
    A("L_end:"); A("s_endpgm")
    A('.section .rodata,"a"'); A(".p2align 6"); A(f".amdhsa_kernel {NAME}_kernel")
    A("  .amdhsa_next_free_vgpr 168"); A("  .amdhsa_next_free_sgpr 100"); A("  .amdhsa_accum_offset 168")
    A("  .amdhsa_group_segment_fixed_size 0"); A("  .amdhsa_kernarg_size 64"); A("  .amdhsa_user_sgpr_count 2")
    A("  .amdhsa_user_sgpr_kernarg_segment_ptr 1"); A("  .amdhsa_system_sgpr_workgroup_id_x 1"); A(".end_amdhsa_kernel")
    open(out, "w").write("\n".join(L) + "\n")

if __name__ == "__main__":
    gen("f0.s", Cfg)
    class P(Cfg): probe = 12; na = 1
    gen("f1.s", P)
    class C2(P): stamps = True
    gen("f1s.s", C2)
    class C2(P): q_release = 20
    gen("f2.s", C2)
    class C2(P): q_release = 23
    gen("f3.s", C2)
    class C2(P): force_fallback = True
    gen("f1f.s", C2)
```
